```python
import torch

def _softmax(x, axis=-1):
    return torch.softmax(x, dim=axis)
def _gelu(x):
    return torch.nn.functional.gelu(x, approximate="tanh")
def _silu(x):
    return torch.nn.functional.silu(x)
def _sigmoid(x):
    return torch.sigmoid(x)
def _layernorm(x, axis=-1, eps=1e-5):
    m = x.mean(dim=axis, keepdim=True)
    v = x.var(dim=axis, keepdim=True, unbiased=False)
    return (x - m) / torch.sqrt(v + eps)
def _scatter_add(tgt, idx, src, axis=0):
    return tgt.clone().index_add_(axis, idx, src)
def _segment_sum(src, seg, n):
    out = torch.zeros((n,) + src.shape[1:], dtype=src.dtype)
    return out.index_add_(0, seg, src)
def _pad(x, pw):
    flat = tuple(v for pair in reversed(pw) for v in pair)
    return torch.nn.functional.pad(x, flat)

kernel_name = 'standalone__modern_conv_block_slak__vision'

def setup_inputs():

    _w = (lambda a: (lambda t: t.to(torch.bfloat16) if t.is_floating_point() else t)(torch.as_tensor(a)))
    H = W = 384
    C = 96
    K = 3
    return {
        "x": _w((lambda *s: torch.randn(*s, dtype=torch.bfloat16) * 0.05)(1, H, W, C)),
        "dw": _w((lambda *s: torch.randn(*s, dtype=torch.bfloat16) * 0.05)(K, K, C)),
        "w1": _w((lambda *s: torch.randn(*s, dtype=torch.bfloat16) * 0.05)(C, 4 * C)),
        "w2": _w((lambda *s: torch.randn(*s, dtype=torch.bfloat16) * 0.05)(4 * C, C)),
        "grn_g": _w((lambda *s: torch.randn(*s, dtype=torch.bfloat16) * 0.05)(4 * C)),
        "grn_b": _w((lambda *s: torch.randn(*s, dtype=torch.bfloat16) * 0.05)(4 * C)),
    }

def reference(x, dw, w1, w2, grn_g, grn_b):
    B, H, W, C = x.shape
    K = dw.shape[0]
    pad = K // 2
    xp = _pad(x, ((0,0),(pad,pad),(pad,pad),(0,0)))
    out = torch.zeros_like(x)
    for i in range(K):
        for j in range(K):
            out = out + xp[:, i:i+H, j:j+W, :] * dw[i, j][None, None, None, :]
    h = _layernorm(out, axis=-1)
    h = _gelu(h @ w1)
    gx = torch.sqrt((h * h).sum(axis=(1, 2), keepdims=True) + 1e-6)
    nx = gx / (gx.mean(axis=-1, keepdims=True) + 1e-6)
    h = grn_g[None, None, None, :] * (h * nx) + grn_b[None, None, None, :] + h
    return x + h @ w2
```

```python
import math, struct, sys

NAME = "standalone__modern_conv_block_slak__vision"
def f2u(x): return struct.unpack("<I", struct.pack("<f", x))[0]
def hx(x): return "0x%08x" % (x & 0xffffffff)

K0 = math.sqrt(2.0 / math.pi); LOG2E = 1.4426950408889634
GA = 2 * K0 * LOG2E; GB = 2 * K0 * 0.044715 * LOG2E
GC = GB ** (1.0 / 3.0); GK = GA / GC
EPS = 1e-5
ROWB = 73728; XBYTES = 28311552
XR = 0; RING = 10
SL0 = 40960; SLOT = 24576; SL1 = SL0 + SLOT; SL2 = SL0 + 2 * SLOT
LN = SL0 + 4 * SLOT; LNB = 6656
ST = LN + 2 * LNB
MS_S = ST + 4096; MS_B2 = MS_S + 1536; MS_PUB = MS_B2 + 384
LDS_BYTES = 163840
assert MS_PUB + 1536 <= LDS_BYTES
WS_P = 0; WS_RZ = 0x60000; NREP = 8; WS_SPILL = 0x100000
SENT = 0x40000000; BIG = 0x80000000
SPIN = 200000

class Asm:
    def __init__(self): self.l = []; self.nbar = 0; self.vm = []
    def __call__(self, s): self.l.append("  " + s)
    def lab(self, s): self.l.append(s + ":")
    def c(self, s): self.l.append("  ; " + s)
    def bar(self): self("s_barrier"); self.nbar += 1
    def text(self): return "\n".join(self.l) + "\n"
def v(a, n=1): return f"v{a}" if n == 1 else f"v[{a}:{a+n-1}]"
def s(a, n=1): return f"s{a}" if n == 1 else f"s[{a}:{a+n-1}]"

SX, SO, SW, SW1, SW2, SDW, SG, SB, SD = 4, 8, 12, 16, 20, 24, 28, 32, 36
U = [64, 112, 160, 208]

def gen(opt):
    a = Asm()
    XNT = " nt" if opt.get("xnt", 1) else ""
    a("s_cmp_ge_u32 s2, 256")
    a("s_cbranch_scc1 L_END")
    a("s_load_dwordx16 s[64:79], s[0:1], 0")
    a("s_load_dwordx2 s[80:81], s[0:1], 64")
    a("v_lshrrev_b32 v1, 6, v0")
    a("v_and_b32 v2, 63, v0")
    a("v_readfirstlane_b32 s40, v1")
    a("s_and_b32 s45, s2, 7")
    a("s_lshl_b32 s45, s45, 5")
    a("s_lshr_b32 s46, s2, 3")
    a("s_add_u32 s45, s45, s46")
    a("s_lshr_b32 s46, s45, 3")
    a("s_and_b32 s47, s45, 7")
    a(f"s_mul_i32 s42, s46, {12*ROWB}")
    a(f"s_mul_i32 s48, s47, {48*192}")
    a("s_add_u32 s42, s42, s48")
    a(f"s_sub_u32 s43, s42, {ROWB}")
    a("s_cmp_eq_u32 s46, 0")
    a(f"s_cselect_b32 s43, {hx(BIG)}, s43")
    a(f"s_add_u32 s44, s42, {12*ROWB}")
    a("s_cmp_eq_u32 s46, 31")
    a(f"s_cselect_b32 s44, {hx(BIG)}, s44")
    a("s_and_b32 s41, s40, 3")
    a(f"s_mov_b32 s50, {hx(f2u(GK))}"); a("s_mov_b32 s51, s50")
    a(f"s_mov_b32 s52, {hx(f2u(1/96.0))}"); a("s_mov_b32 s53, s52")
    a(f"s_mov_b32 s54, {hx(f2u(6*EPS))}"); a("s_mov_b32 s55, s54")
    a(f"s_mov_b32 s56, {hx(f2u(GC))}")
    a(f"s_mov_b32 s57, {hx(f2u(EPS))}")
    for r, n in ((SX, XBYTES + 192), (SO, XBYTES), (SW, 268435456), (SW1, 73728), (SW2, 73728), (SDW, 1728), (SG, 768), (SB, 768), (SD, 256)):
        a(f"s_mov_b32 s{r+2}, {n}"); a(f"s_mov_b32 s{r+3}, 0x20000")
    a("s_waitcnt lgkmcnt(0)")
    a(f"s_sub_u32 s{SX}, s64, 192"); a(f"s_subb_u32 s{SX+1}, s65, 0")
    for r, p in ((SDW, 66), (SW1, 68), (SW2, 70), (SG, 72), (SB, 74), (SO, 76), (SD, 78), (SW, 80)):
        a(f"s_mov_b32 s{r}, s{p}"); a(f"s_mov_b32 s{r+1}, s{p+1}")
    a("s_cmp_ge_u32 s40, 4")
    a("s_cbranch_scc1 L_H")

    def owner_addr(d0, d1, base, t0, t1, t2):
        a(f"v_lshrrev_b32 {v(t0)}, 4, v2")
        a(f"v_bfe_u32 {v(t1)}, v2, 2, 2")
        a(f"v_lshl_add_u32 {v(d0)}, {v(t0)}, 3, {v(t1)}")
        a(f"v_lshlrev_b32 {v(d0)}, 6, {v(d0)}")
        a(f"v_and_b32 {v(t0)}, 1, {v(t0)}")
        a(f"v_lshlrev_b32 {v(t0)}, 1, {v(t0)}")
        a(f"v_lshrrev_b32 {v(t1)}, 1, {v(t1)}")
        a(f"v_xor_b32 {v(t0)}, {v(t0)}, {v(t1)}")
        a(f"v_bfe_u32 {v(t1)}, v2, 1, 1")
        a("s_and_b32 s45, s41, 1"); a("s_lshl_b32 s45, s45, 1")
        a(f"v_or_b32 {v(t1)}, s45, {v(t1)}")
        a(f"v_xor_b32 {v(t0)}, {v(t0)}, {v(t1)}")
        a(f"v_lshl_add_u32 {v(d0)}, {v(t0)}, 4, {v(d0)}")
        a(f"v_and_b32 {v(t1)}, 1, v2")
        a(f"v_lshl_add_u32 {v(d0)}, {v(t1)}, 3, {v(d0)}")
        a("s_lshr_b32 s45, s41, 1"); a(f"s_mul_i32 s45, s45, {SLOT}"); a(f"s_add_u32 s45, s45, {base}")
        a(f"v_add_u32 {v(d0)}, s45, {v(d0)}")
        a(f"v_xor_b32 {v(d1)}, 32, {v(d0)}")
        a(f"v_add_u32 {v(d1)}, 256, {v(d1)}")

    def owner_read(dst, o0, o1, imm):
        for ks in range(12):
            a(f"ds_read_b64_tr_b16 {v(dst+4*ks,2)}, {v(o0)} offset:{imm+ks*2048}")
            a(f"ds_read_b64_tr_b16 {v(dst+4*ks+2,2)}, {v(o1)} offset:{imm+ks*2048}")

    def unit_off(sd, m):
        a(f"s_mul_i32 s{sd}, s41, {ROWB}")
        a(f"s_add_u32 s{sd}, s{sd}, s42")
        a(f"s_add_u32 s{sd}, s{sd}, {4*(m%3)*ROWB + (m//3)*3072}")

    def w2_raw_loads(R, t0, t1, t2):
        a(f"v_mbcnt_lo_u32_b32 {v(t2)}, -1, 0"); a(f"v_mbcnt_hi_u32_b32 {v(t2)}, -1, {v(t2)}")
        a("s_lshl_b32 s45, s40, 6"); a(f"v_add_u32 {v(t2)}, s45, {v(t2)}")
        a(f"v_lshrrev_b32 {v(t0)}, 2, {v(t2)}")
        a(f"v_mul_u32_u24 {v(t0)}, 192, {v(t0)}")
        a(f"v_and_b32 {v(t1)}, 3, {v(t2)}")
        a(f"v_lshl_add_u32 {v(t0)}, {v(t1)}, 4, {v(t0)}")
        a(f"v_lshrrev_b32 {v(t1)}, 2, {v(t2)}"); a(f"v_and_b32 {v(t1)}, 8, {v(t1)}")
        a(f"v_or_b32 {v(t0)}, {v(t0)}, {v(t1)}")
        a(f"v_xor_b32 {v(t1)}, 8, {v(t0)}")
        a("s_mov_b32 s46, 0"); a("s_mov_b32 s47, 24576"); a("s_mov_b32 s48, 49152")
        for j in range(3):
            for m in range(3):
                r = R + (j*3+m)*4
                a(f"buffer_load_dwordx2 {v(r,2)}, {v(t0)}, {s(SW2,4)}, s{46+j} offen offset:{m*64}")
                a(f"buffer_load_dwordx2 {v(r+2,2)}, {v(t1)}, {s(SW2,4)}, s{46+j} offen offset:{m*64}")

    X = [0, 16]; T = 32; S = 48; GLN = 54; GW0 = 55; GW1 = 56; GO0 = 57; GO1 = 58; GPUB = 59
    WF = 64; LF = 136
    a.c("================ G prologue")
    a("s_mul_i32 s45, s41, 192")
    for b in range(3):
        a(f"v_add_u32 v3, {64*b}, v2")
        a("v_mul_u32_u24 v4, 171, v3"); a("v_lshrrev_b32 v4, 11, v4")
        a("v_mul_u32_u24 v5, 12, v4"); a("v_sub_u32 v5, v3, v5")
        a("v_mul_u32_u24 v4, 768, v4")
        a(f"v_lshl_add_u32 v{8+b}, v5, 4, v4")
        a(f"v_add_u32 v{8+b}, s45, v{8+b}")
    a("s_mul_i32 s46, s41, 18432"); a(f"s_add_u32 s46, s46, {SL1}")
    for i in range(18):
        a(f"s_add_u32 m0, s46, {1024*i}")
        a(f"s_mov_b32 s47, {12288*(i//3)}")
        a(f"buffer_load_dwordx4 v{8+i%3}, {s(SW1,4)}, s47 offen lds")
    a("s_mul_i32 s45, s41, 24"); a("v_add_u32 v3, s45, v2"); a("v_lshlrev_b32 v3, 12, v3")
    a("s_lshl_b32 s45, s2, 4"); a("v_add_u32 v3, s45, v3")
    a("v_cmp_gt_u32 vcc, 24, v2"); a(f"v_mov_b32 v4, {hx(SENT)}")
    a("v_mov_b32 v12, -1"); a("v_mov_b32 v13, -1"); a("v_mov_b32 v14, -1"); a("v_mov_b32 v15, -1")
    a(f"v_cndmask_b32 {v(GPUB)}, v4, v3, vcc")
    a(f"buffer_store_dwordx4 v[12:15], {v(GPUB)}, {s(SW,4)}, 0 offen sc1")
    a("s_cmp_ge_u32 s2, 96"); a("s_cbranch_scc1 L_G1")
    a("s_cmp_lg_u32 s40, 0"); a("s_cbranch_scc1 L_G1")
    a("v_lshlrev_b32 v3, 11, v2"); a(f"v_cmp_gt_u32 vcc, {NREP}, v2"); a("s_nop 1")
    a("v_cndmask_b32 v3, v4, v3, vcc")
    a(f"s_add_u32 s45, s45, {WS_RZ}")
    a(f"buffer_store_dwordx4 v[12:15], v3, {s(SW,4)}, s45 offen sc1")
    a("s_lshl_b32 s45, s2, 2"); a(f"s_add_u32 s45, s45, {WS_RZ+1536}")
    a(f"buffer_store_dword v12, v3, {s(SW,4)}, s45 offen sc1")
    a.lab("L_G1")
    a.bar()
    a("v_and_b32 v3, 0x13, v2")
    a("v_bfe_u32 v4, v2, 2, 1"); a("v_lshl_or_b32 v3, v4, 3, v3")
    a("v_bfe_u32 v4, v2, 3, 1"); a("v_lshl_or_b32 v3, v4, 2, v3")
    a("v_mul_u32_u24 v3, 208, v3")
    a("v_lshrrev_b32 v4, 5, v2"); a("v_lshl_add_u32 v3, v4, 4, v3")
    a(f"v_add_u32 {v(GLN)}, {LN}, v3")
    a("v_bfe_u32 v3, v2, 1, 2"); a("v_bfe_u32 v5, v2, 3, 1"); a("v_lshlrev_b32 v5, 1, v5")
    a("v_xor_b32 v3, v3, v5"); a("v_xor_b32 v3, v3, v4")
    a("v_and_b32 v5, 31, v2"); a("v_lshlrev_b32 v5, 6, v5"); a("v_lshl_add_u32 v3, v3, 4, v5")
    a(f"s_mul_i32 s45, s41, {96*64}"); a(f"s_add_u32 s45, s45, {SL0}")
    a(f"v_add_u32 {v(GW0)}, s45, v3"); a(f"v_xor_b32 {v(GW1)}, 32, {v(GW0)}")
    owner_addr(GO0, GO1, SL0, 3, 4, 5)
    a("v_lshrrev_b32 v3, 5, v2"); a("v_bfe_u32 v4, v2, 2, 2"); a("v_lshl_add_u32 v3, v3, 3, v4")
    a("v_mul_u32_u24 v3, 192, v3")
    a("v_bfe_u32 v4, v2, 4, 1"); a("v_lshl_add_u32 v3, v4, 5, v3")
    a("v_and_b32 v4, 3, v2"); a("v_lshl_add_u32 v3, v4, 3, v3")
    a("v_add_u32 v3, s46, v3")
    for i in range(6): a(f"v_mov_b32 v{S+i}, 0")
    a("s_waitcnt vmcnt(0)")
    for blk in range(3):
        for ks in range(6):
            for hf in range(2):
                a(f"ds_read_b64_tr_b16 {v(WF+(blk*6+ks)*4+2*hf,2)}, v3 offset:{(16*ks+4*hf)*192+blk*64}")
    a("s_waitcnt lgkmcnt(0)")
    a.bar()
    for ks in range(6): a(f"ds_read_b128 {v(LF+4*ks,4)}, {v(GLN)} offset:{ks*32}")
    a("s_cmp_lg_u32 s40, 0"); a("s_cbranch_scc1 L_G2")
    a("v_cmp_eq_u32 vcc, 0, v2"); a(f"v_mov_b32 v4, {hx(SENT)}"); a("v_mov_b32 v5, 1")
    a("v_cndmask_b32 v4, v4, v2, vcc")
    a(f"buffer_atomic_add v5, v4, {s(SD,4)}, 0 offen sc1")
    a.lab("L_G2")
    a("s_mov_b32 s58, 0"); a("s_mov_b32 s59, 49152")
    a("s_waitcnt lgkmcnt(0)")
    def mf(Xd, blk, ks):
        c = "0" if ks == 0 else v(Xd, 16)
        a(f"v_mfma_f32_32x32x16_bf16 {v(Xd,16)}, {v(LF+4*ks,4)}, {v(WF+(blk*6+ks)*4,4)}, {c}")
    for ks in range(6): mf(X[0], 0, ks)
    a("s_nop 15")
    nb0 = a.nbar
    a(".p2align 6")
    a.lab("L_GLOOP")
    n = 0
    for tp in range(2):
        for blk in range(3):
            Xc = X[n & 1]; Xn = X[(n + 1) & 1]; nb = (blk + 1) % 3; n += 1
            a.c(f"tile parity {tp} block {blk}")
            for i in range(8): a(f"v_pk_fma_f32 {v(T+2*i,2)}, {v(Xc+2*i,2)}, {v(Xc+2*i,2)}, s[50:51]")
            for i in range(8): a(f"v_pk_mul_f32 {v(T+2*i,2)}, {v(Xc+2*i,2)}, {v(T+2*i,2)} neg_lo:[1,0] neg_hi:[1,0]")
            if blk == 2: a("s_waitcnt lgkmcnt(2)")
            for i in range(16):
                if i in (0, 3, 6): mf(Xn, nb, i // 3)
                e = "_e64" if (blk == 2 and i == 15) else "_e32"
                a(f"v_exp_f32{e} {v(T+i)}, {v(T+i)}")
            for i in range(8): a(f"v_pk_add_f32 {v(T+2*i,2)}, {v(T+2*i,2)}, 1.0 op_sel_hi:[1,0]")
            for i in range(16):
                if i in (0, 3, 6): mf(Xn, nb, 3 + i // 3)
                if i == 7 and blk == 1:
                    a("s_waitcnt lgkmcnt(0)"); a.bar()
                    for ks in range(6): a(f"ds_read_b128 {v(LF+4*ks,4)}, {v(GLN)} offset:{ks*32 + (1-tp)*LNB}")
                    if tp == 0:
                        a("s_cmp_eq_u32 s58, 3"); a("s_cbranch_scc1 L_GOWN_A")
                        a("s_cmp_eq_u32 s58, 4"); a("s_cbranch_scc1 L_GOWN_B")
                        a.lab("L_GOWN_RET")
                a(f"v_rcp_f32_e32 {v(T+i)}, {v(T+i)}")
            for i in range(8): a(f"v_pk_mul_f32 {v(Xc+2*i,2)}, {v(Xc+2*i,2)}, {v(T+2*i,2)}")
            for i in range(8):
                a(f"v_pk_fma_f32 {v(S+2*blk,2)}, {v(Xc+2*i,2)}, {v(Xc+2*i,2)}, {v(S+2*blk,2)}")
                a(f"v_cvt_pk_bf16_f32 {v(T+i)}, {v(Xc+2*i)}, {v(Xc+2*i+1)}")
            a(f"ds_write_b128 {v(GW0)}, {v(T,4)} offset:{blk*2048+tp*SLOT}")
            a(f"ds_write_b128 {v(GW1)}, {v(T+4,4)} offset:{blk*2048+tp*SLOT}")
    a("s_cmp_eq_u32 s58, 7"); a(f"s_cselect_b32 s45, {SLOT}, 0"); a("s_sub_u32 s45, s59, s45")
    a(f"v_add_u32 {v(GW0)}, s45, {v(GW0)}"); a(f"v_add_u32 {v(GW1)}, s45, {v(GW1)}")
    a("s_sub_u32 s59, 0, s59")
    a("s_add_u32 s58, s58, 1"); a("s_cmp_lt_u32 s58, 9"); a("s_cbranch_scc1 L_GLOOP")
    g_bars = nb0 + (a.nbar - nb0) * 9
    nb1 = a.nbar
    a.c("================ G window: publish")
    a("v_mbcnt_lo_u32_b32 v2, -1, 0"); a("v_mbcnt_hi_u32_b32 v2, -1, v2")
    for b in range(3): a(f"v_add_f32 v{4+b}, v{S+2*b}, v{S+2*b+1}")
    for b in range(3): a(f"v_mov_b32 v{8+b}, v{4+b}")
    a("v_and_b32 v3, 31, v2"); a("v_lshlrev_b32 v3, 2, v3")
    a(f"s_mul_i32 s45, s41, 384"); a(f"s_add_u32 s45, s45, {MS_PUB}")
    for b in range(3): a(f"v_permlane32_swap_b32 v{4+b}, v{8+b}")
    a("v_add_u32 v3, s45, v3")
    a("v_min_u32 v12, 23, v2"); a("v_lshlrev_b32 v12, 4, v12")
    for b in range(3): a(f"v_add_f32 v{4+b}, v{4+b}, v{8+b}")
    for b in range(3): a(f"v_and_b32 v{4+b}, 0x7fffffff, v{4+b}")
    a("v_add_u32 v12, s45, v12")
    for b in range(3): a(f"ds_write_b32 v3, v{4+b} offset:{128*b}")
    a("s_waitcnt lgkmcnt(0)")
    a("ds_read_b128 v[16:19], v12")
    a("s_waitcnt lgkmcnt(0)")
    a(f"buffer_store_dwordx4 v[16:19], {v(GPUB)}, {s(SW,4)}, 0 offen sc1")
    a("v_lshlrev_b32 v3, 4, v2")
    a(f"s_mul_i32 s45, s2, 49152"); a("s_mul_i32 s46, s41, 12288"); a("s_add_u32 s45, s45, s46"); a(f"s_add_u32 s45, s45, {WS_SPILL}")
    for ks in range(12):
        if ks and ks % 4 == 0: a("s_add_u32 s45, s45, 4096")
        a(f"buffer_load_dwordx4 {v(U[1]+4*ks,4)}, v3, {s(SW,4)}, s45 offen offset:{(ks%4)*1024}")
    owner_read(U[0], GO0, GO1, 0)
    w2_raw_loads(24, 60, 61, 62)
    unit_off(60, 7); unit_off(61, 4); unit_off(62, 2); unit_off(63, 3)
    a("s_branch L_PREP")
    a.lab("L_GOWN_A")
    owner_read(U[2], GO0, GO1, 0)
    a(f"v_add_u32 {v(GO0)}, 49152, {v(GO0)}"); a(f"v_add_u32 {v(GO1)}, 49152, {v(GO1)}")
    a("s_branch L_GOWN_RET")
    a.lab("L_GOWN_B")
    owner_read(U[3], GO0, GO1, 0)
    a("s_branch L_GOWN_RET")

    nbH0 = a.nbar
    ACC = [0, 12]; TMP = 24; PK = 40; AB = 48; SA = 50; SQ = 52
    XA, XW, VO, STW, STR, LNW, HO0, HO1 = 54, 55, 56, 59, 60, 61, 62, 63
    CF = 64
    BF = [100, 104, 108, 24, 28, 32, 36, 40, 44]
    a(".p2align 6")
    a.lab("L_H")
    vm = []
    a("v_mul_u32_u24 v3, 86, v2"); a("v_lshrrev_b32 v3, 8, v3")
    a("v_mul_u32_u24 v4, 3, v3"); a("v_sub_u32 v4, v2, v4")
    a("v_mul_u32_u24 v5, 192, v3"); a("v_lshl_add_u32 v5, v4, 4, v5")
    a("s_mul_i32 s45, s41, 48"); a("v_add_u32 v5, s45, v5")
    a(f"v_mov_b32 v6, {hx(SENT)}")
    a("v_cmp_gt_u32 vcc, 54, v2"); a("s_nop 1"); a(f"v_cndmask_b32 {v(VO+1)}, v6, v5, vcc")
    a("s_cmp_eq_u32 s47, 0"); a("s_cselect_b32 s45, 0, 99")
    a("v_cmp_eq_u32 vcc, s45, v3"); a("s_nop 1"); a(f"v_cndmask_b32 {v(VO)}, {v(VO+1)}, v6, vcc")
    a("s_cmp_eq_u32 s47, 7"); a("s_cselect_b32 s45, 17, 99")
    a("v_cmp_eq_u32 vcc, s45, v3"); a("s_nop 1"); a(f"v_cndmask_b32 {v(VO+2)}, {v(VO+1)}, v6, vcc")
    a(f"s_mul_i32 s49, s41, {RING*1024}")
    def dma_row(n):
        st, i = divmod(n, 14)
        a(f"s_add_u32 m0, s49, {(n % RING)*1024}")
        if i == 0: a(f"s_add_u32 s45, s43, {st*3072}")
        elif i == 13: a(f"s_add_u32 s45, s44, {st*3072}")
        else: a(f"s_add_u32 s45, s42, {(i-1)*ROWB + st*3072}")
        a(f"buffer_load_dwordx4 {v(VO+st)}, {s(SX,4)}, s45 offen{XNT} lds")
        vm.append(("row", n))
    def vmwait(tag):
        idx = max(i for i, t in enumerate(vm) if t == tag)
        a(f"s_waitcnt vmcnt({len(vm)-1-idx})")
    for n in range(4): dma_row(n)
    a("v_lshrrev_b32 v3, 4, v2"); a("v_bfe_u32 v4, v2, 3, 1"); a("v_sub_u32 v3, v3, v4")
    a("v_and_b32 v4, 7, v2")
    a("v_mul_u32_u24 v5, 576, v3"); a("v_lshl_add_u32 v5, v4, 1, v5")
    a("s_mul_i32 s45, s41, 48"); a("v_add_u32 v5, s45, v5")
    a("v_cmp_gt_u32 vcc, 3, v3"); a("s_nop 1"); a("v_cndmask_b32 v5, v6, v5, vcc")
    for grp in range(3):
        for m in range(3):
            a(f"buffer_load_ushort v{24+grp*3+m}, v5, {s(SDW,4)}, 0 offen offset:{m*192+grp*16}"); vm.append(("dw", grp*3+m))
    for n in range(4, RING): dma_row(n)
    loaded = RING
    a("v_and_b32 v7, 1, v2"); a("v_lshlrev_b32 v7, 4, v7")
    a("v_mov_b32 v12, 0xffff"); a("v_lshlrev_b32 v12, v7, v12")
    a("v_bfe_u32 v13, v2, 1, 2")
    for d in range(4):
        a(f"v_cmp_eq_u32 vcc, {d}, v13"); a("s_nop 1"); a(f"v_cndmask_b32 v{8+d}, 0, v12, vcc")
    a("v_and_b32 v3, 15, v2"); a("v_lshrrev_b32 v4, 4, v2")
    a("v_mul_u32_u24 v5, 48, v3"); a("v_add_u32 v5, s49, v5")
    a(f"v_lshl_add_u32 {v(XA)}, v4, 10, v5")
    a(f"v_add_u32 v14, {RING-2}, v4"); a(f"v_subrev_u32 v15, {RING}, v14"); a("v_min_u32 v14, v14, v15")
    a(f"v_lshl_add_u32 {v(XW)}, v14, 10, v5")
    a("v_lshrrev_b32 v14, 5, v2"); a("v_lshl_add_u32 v14, v14, 4, v3")
    a("v_and_b32 v15, 1, v4")
    a(f"v_lshlrev_b32 {v(STR)}, 3, v14"); a(f"v_add_u32 {v(STR)}, {ST}, {v(STR)}")
    a("s_lshl_b32 s45, s41, 9"); a(f"v_lshl_add_u32 {v(STW)}, v15, 8, {v(STR)}"); a(f"v_add_u32 {v(STW)}, s45, {v(STW)}")
    a(f"v_mul_u32_u24 {v(LNW)}, 208, v14"); a(f"v_lshl_add_u32 {v(LNW)}, v15, 3, {v(LNW)}")
    a("s_mul_i32 s45, s41, 48"); a(f"s_add_u32 s45, s45, {LN}"); a(f"v_add_u32 {v(LNW)}, s45, {v(LNW)}")
    owner_addr(HO0, HO1, SL0 - SLOT, 3, 4, 5)
    vmwait(("dw", 8))
    for f in range(9):
        a(f"v_lshlrev_b32 v{24+f}, v7, v{24+f}")
        for d in range(4): a(f"v_and_b32 v{CF+4*f+d}, v{24+f}, v{8+d}")
    def n0(u): return 14*(u//6) + 2*(u % 6)
    def stageA(u):
        nonlocal loaded
        ac = ACC[u & 1]; r0 = n0(u) % RING
        a.c(f"stage A tile {u}")
        vmwait(("row", n0(u)+3))
        base, ro = (XW, 0) if r0 == RING-2 else (XA, r0*1024)
        for m in range(3):
            for grp in range(3):
                a(f"ds_read_b128 {v(BF[m*3+grp],4)}, {v(base)} offset:{ro+m*48+grp*16}")
        for m in range(3):
            a(f"s_waitcnt lgkmcnt({6-3*m})")
            for grp in range(3):
                c = "0" if m == 0 else v(ac+4*grp, 4)
                a(f"v_mfma_f32_16x16x32_bf16 {v(ac+4*grp,4)}, {v(CF+(grp*3+m)*4,4)}, {v(BF[m*3+grp],4)}, {c}")
        lim = min(42, n0(u+1) + RING) if u < 17 else 42
        while loaded < lim: dma_row(loaded); loaded += 1
        a("s_nop 7")
        a(f"v_pk_add_f32 {v(SA,2)}, {v(ac,2)}, {v(ac+2,2)}")
        a(f"v_pk_fma_f32 {v(SQ,2)}, {v(ac,2)}, {v(ac,2)}, s[54:55]")
        for i in range(1, 6):
            if i > 1: a(f"v_pk_add_f32 {v(SA,2)}, {v(SA,2)}, {v(ac+2*i,2)}")
            a(f"v_pk_fma_f32 {v(SQ,2)}, {v(ac+2*i,2)}, {v(ac+2*i,2)}, {v(SQ,2)}")
        a(f"v_add_f32 {v(SA)}, {v(SA)}, {v(SA+1)}")
        a(f"v_add_f32 {v(SA+1)}, {v(SQ)}, {v(SQ+1)}")
        a(f"ds_write_b64 {v(STW)}, {v(SA,2)} offset:{(u&1)*2048}")
    def stageB(u):
        ac = ACC[u & 1]
        a.c(f"stage B tile {u}")
        for i in range(8): a(f"ds_read_b64 {v(TMP+2*i,2)}, {v(STR)} offset:{(u&1)*2048+i*256}")
        a("s_waitcnt lgkmcnt(0)")
        for i in range(4): a(f"v_pk_add_f32 {v(TMP+2*i,2)}, {v(TMP+2*i,2)}, {v(TMP+8+2*i,2)}")
        for i in range(2): a(f"v_pk_add_f32 {v(TMP+2*i,2)}, {v(TMP+2*i,2)}, {v(TMP+4+2*i,2)}")
        a(f"v_pk_add_f32 {v(TMP,2)}, {v(TMP,2)}, {v(TMP+2,2)}")
        a(f"v_pk_mul_f32 {v(TMP,2)}, {v(TMP,2)}, s[52:53]")
        a(f"v_fma_f32 {v(TMP+1)}, -{v(TMP)}, {v(TMP)}, {v(TMP+1)}")
        a(f"v_max_f32 {v(TMP+1)}, s57, {v(TMP+1)}")
        a(f"v_rsq_f32 {v(TMP+1)}, {v(TMP+1)}")
        a("s_nop 0")
        a(f"v_mul_f32 {v(AB)}, s56, {v(TMP+1)}")
        a(f"v_mul_f32 {v(AB+1)}, -{v(TMP)}, {v(AB)}")
        for i in range(6):
            a(f"v_pk_fma_f32 {v(ac+2*i,2)}, {v(ac+2*i,2)}, {v(AB,2)}, {v(AB,2)} op_sel:[0,0,1] op_sel_hi:[1,0,1]")
        for i in range(6): a(f"v_cvt_pk_bf16_f32 {v(PK+i)}, {v(ac+2*i)}, {v(ac+2*i+1)}")
        for grp in range(3): a(f"ds_write_b64 {v(LNW)}, {v(PK+2*grp,2)} offset:{(u&1)*LNB+grp*16}")
    def h_owner(m, dst):
        a.c(f"owner read pair {m}")
        if m % 2 == 0: owner_read(dst, HO0, HO1, SLOT)
        else:
            a(f"v_add_u32 {v(SA)}, {3*SLOT}, {v(HO0)}"); a(f"v_add_u32 {v(SA+1)}, {3*SLOT}, {v(HO1)}")
            owner_read(dst, SA, SA+1, 0)
    def endint(): a("s_waitcnt lgkmcnt(0)"); a.bar()
    stageA(0); endint()
    stageB(0); stageA(1); endint()
    h_homes = {0: U[1], 1: U[2], 4: U[3], 5: U[3]}
    for t in range(18):
        if t + 1 <= 17: stageB(t + 1)
        if t >= 3 and t % 2 == 1 and (t-3)//2 in h_homes:
            m = (t-3)//2; h_owner(m, h_homes[m])
        if t == 12:
            a.c("spill pair 4 from U3")
            a("v_mbcnt_lo_u32_b32 v24, -1, 0"); a("v_mbcnt_hi_u32_b32 v24, -1, v24"); a("v_lshlrev_b32 v24, 4, v24")
            a(f"s_mul_i32 s45, s2, 49152"); a("s_mul_i32 s46, s41, 12288"); a("s_add_u32 s45, s45, s46"); a(f"s_add_u32 s45, s45, {WS_SPILL}")
            for ks in range(12):
                if ks and ks % 4 == 0: a("s_add_u32 s45, s45, 4096")
                a(f"buffer_store_dwordx4 {v(U[3]+4*ks,4)}, v24, {s(SW,4)}, s45 offen offset:{(ks%4)*1024}"); vm.append(("spill", ks))
            a("s_nop 1")
        if t + 2 <= 17: stageA(t + 2)
        if t == 16: h_owner(6, U[0])
        if t == 17:
            a("s_waitcnt vmcnt(0)")
            a.c("b2 = grn_b @ W2 column wg (wg<96, hw==2)")
            a("v_mbcnt_lo_u32_b32 v2, -1, 0"); a("v_mbcnt_hi_u32_b32 v2, -1, v2")
            a("s_cmp_ge_u32 s2, 96"); a("s_cbranch_scc1 L_H1")
            a("s_cmp_lg_u32 s41, 2"); a("s_cbranch_scc1 L_H1")
            a("v_mul_u32_u24 v3, 192, v2"); a("v_lshlrev_b32 v4, 1, v2"); a("s_lshl_b32 s45, s2, 1")
            for i in range(6):
                a(f"buffer_load_ushort v{8+i}, v3, {s(SW2,4)}, s45 offen")
                a(f"buffer_load_ushort v{16+i}, v4, {s(SB,4)}, 0 offen offset:{128*i}")
                if i < 5: a("s_add_u32 s45, s45, 12288")
            a("s_waitcnt vmcnt(0)")
            for i in range(6): a(f"v_lshlrev_b32 v{8+i}, 16, v{8+i}"); a(f"v_lshlrev_b32 v{16+i}, 16, v{16+i}")
            a("v_mul_f32 v5, v8, v16")
            for i in range(1, 6): a(f"v_fmac_f32 v5, v{8+i}, v{16+i}")
            wave_sum(a, [5], [6])
            a("v_lshlrev_b32 v3, 11, v2"); a(f"v_cmp_gt_u32 vcc, {NREP}, v2"); a(f"v_mov_b32 v4, {hx(SENT)}")
            a("s_lshl_b32 s45, s2, 2"); a(f"s_add_u32 s45, s45, {WS_RZ+1536}")
            a("v_cndmask_b32 v3, v4, v3, vcc")
            a(f"buffer_store_dword v5, v3, {s(SW,4)}, s45 offen sc1")
            a.lab("L_H1")
            a.c("init counter check (hw 0,1)")
            a("s_cmp_ge_u32 s41, 2"); a("s_cbranch_scc1 L_H3")
            a(f"s_mov_b32 s46, {SPIN}"); a("v_mov_b32 v3, 0")
            a.lab("L_H2")
            a(f"buffer_load_dword v4, v3, {s(SD,4)}, 0 offen sc1")
            a("s_waitcnt vmcnt(0)")
            a("v_readfirstlane_b32 s45, v4")
            a("s_cmp_ge_u32 s45, 256"); a("s_cbranch_scc1 L_H3")
            a("s_sub_u32 s46, s46, 1"); a("s_cmp_lg_u32 s46, 0"); a("s_cbranch_scc1 L_H2")
            a.lab("L_H3")
        endint()
    h_bars = a.nbar - nbH0
    assert h_bars == g_bars, (h_bars, g_bars)
    a.c("================ H window")
    w2_raw_loads(24, 60, 61, 59)
    unit_off(60, 6); unit_off(61, 0); unit_off(62, 1); unit_off(63, 5); unit_off(82, 8)
    a("s_cmp_lg_u32 s41, 0"); a("s_cbranch_scc1 L_H5")
    a("s_cmp_ge_u32 s2, 96"); a("s_cbranch_scc1 L_PREP")
    a("v_lshlrev_b32 v3, 4, v2"); a("s_lshl_b32 s45, s2, 12"); a(f"s_mov_b32 s46, {SPIN}")
    a.lab("L_R1")
    for i in range(4): a(f"buffer_load_dwordx4 {v(4+4*i,4)}, v3, {s(SW,4)}, s45 offen offset:{1024*i} sc1")
    a("s_waitcnt vmcnt(0)")
    a("v_or3_b32 v20, v4, v5, v6"); a("v_or3_b32 v21, v7, v8, v9"); a("v_or3_b32 v22, v10, v11, v12")
    a("v_or3_b32 v23, v13, v14, v15"); a("v_or3_b32 v20, v20, v16, v17"); a("v_or3_b32 v21, v21, v18, v19")
    a("v_or3_b32 v20, v20, v21, v22"); a("v_or_b32 v20, v20, v23")
    a("v_cmp_gt_i32 vcc, 0, v20"); a("s_cbranch_vccz L_R2")
    a("s_sub_u32 s46, s46, 1"); a("s_cmp_lg_u32 s46, 0"); a("s_cbranch_scc1 L_R1")
    a.lab("L_R2")
    a("v_pk_add_f32 v[4:5], v[4:5], v[8:9]"); a("v_pk_add_f32 v[6:7], v[6:7], v[10:11]")
    a("v_pk_add_f32 v[12:13], v[12:13], v[16:17]"); a("v_pk_add_f32 v[14:15], v[14:15], v[18:19]")
    a("v_pk_add_f32 v[4:5], v[4:5], v[12:13]"); a("v_pk_add_f32 v[6:7], v[6:7], v[14:15]")
    wave_sum(a, [4, 5, 6, 7], [8, 9, 10, 11])
    for i in range(4): a(f"v_and_b32 v{4+i}, 0x7fffffff, v{4+i}")
    a("v_lshlrev_b32 v3, 11, v2"); a(f"v_cmp_gt_u32 vcc, {NREP}, v2"); a(f"v_mov_b32 v8, {hx(SENT)}")
    a("s_lshl_b32 s45, s2, 4"); a(f"s_add_u32 s45, s45, {WS_RZ}")
    a("v_cndmask_b32 v3, v8, v3, vcc")
    a(f"buffer_store_dwordx4 v[4:7], v3, {s(SW,4)}, s45 offen sc1")
    a("s_branch L_PREP")
    a.lab("L_H5")
    a("s_cmp_lg_u32 s41, 1"); a("s_cbranch_scc1 L_PREP")
    a("v_mul_u32_u24 v3, 24, v2"); a("v_min_u32 v4, 47, v2"); a("v_lshlrev_b32 v4, 3, v4")
    a("v_mul_u32_u24 v5, 12, v2")
    a(f"buffer_load_dwordx3 v[18:20], v5, {s(SG,4)}, 0 offen")
    a(f"s_and_b32 s45, s2, {NREP-1}"); a("s_lshl_b32 s45, s45, 11"); a(f"s_add_u32 s45, s45, {WS_RZ}")
    a(f"s_mov_b32 s46, {SPIN}")
    a.lab("L_P1")
    a(f"buffer_load_dwordx3 v[8:10], v3, {s(SW,4)}, s45 offen sc1")
    a(f"buffer_load_dwordx3 v[12:14], v3, {s(SW,4)}, s45 offen offset:12 sc1")
    a(f"buffer_load_dwordx2 v[16:17], v4, {s(SW,4)}, s45 offen offset:1536 sc1")
    a("s_waitcnt vmcnt(0)")
    a("v_or3_b32 v6, v8, v9, v10"); a("v_or3_b32 v7, v12, v13, v14"); a("v_or_b32 v6, v6, v7")
    a("v_cmp_gt_i32 vcc, 0, v6")
    a("v_cmp_eq_u32 s[84:85], -1, v16")
    a("v_cmp_eq_u32 s[86:87], -1, v17")
    a("s_nop 1")
    a("s_or_b64 s[84:85], vcc, s[84:85]"); a("s_or_b64 s[84:85], s[84:85], s[86:87]")
    a("s_cbranch_scc0 L_P2")
    a("s_sleep 2")
    a("s_sub_u32 s46, s46, 1"); a("s_cmp_lg_u32 s46, 0"); a("s_cbranch_scc1 L_P1")
    a.lab("L_P2")
    sv = [8, 9, 10, 12, 13, 14]
    a(f"s_mov_b32 s46, {hx(f2u(1.0/(GC*GC)))}"); a(f"v_mov_b32 v7, {hx(f2u(1e-6))}")
    for r in sv: a(f"v_fma_f32 v{r}, v{r}, s46, v7")
    for r in sv: a(f"v_sqrt_f32 v{r}, v{r}")
    a(f"v_add_u32 v4, {MS_B2}, v4")
    a("ds_write_b64 v4, v[16:17]")
    a("v_add_f32 v6, v8, v9"); a("v_add_f32 v11, v10, v12"); a("v_add_f32 v15, v13, v14")
    a("v_add_f32 v6, v6, v11"); a("v_add_f32 v6, v6, v15")
    wave_sum(a, [6], [11])
    a(f"s_mov_b32 s46, {hx(f2u(1.0/384.0))}")
    a("v_fma_f32 v6, v6, s46, v7"); a("v_rcp_f32 v6, v6")
    a("v_lshlrev_b32 v21, 16, v18"); a("v_and_b32 v18, 0xffff0000, v18")
    a("v_lshlrev_b32 v22, 16, v19"); a("v_and_b32 v19, 0xffff0000, v19")
    a("v_lshlrev_b32 v23, 16, v20"); a("v_and_b32 v20, 0xffff0000, v20")
    gv = [21, 18, 22, 19, 23, 20]
    a(f"s_mov_b32 s46, {hx(f2u(1.0/GC))}")
    for r in sv: a(f"v_mul_f32 v{r}, v{r}, v6")
    for r, g in zip(sv, gv): a(f"v_fma_f32 v{r}, v{r}, v{g}, 1.0")
    for r in sv: a(f"v_mul_f32 v{r}, s46, v{r}")
    a(f"v_add_u32 v3, {MS_S}, v3")
    a("v_mov_b32 v11, v12")
    a("ds_write_b64 v3, v[8:9]"); a("ds_write_b64 v3, v[10:11] offset:8")
    a("v_mov_b32 v12, v13"); a("v_mov_b32 v13, v14")
    a("ds_write_b64 v3, v[12:13] offset:16")

    a.lab("L_PREP")
    R = 24
    a("v_mbcnt_lo_u32_b32 v2, -1, 0"); a("v_mbcnt_hi_u32_b32 v2, -1, v2")
    a("s_lshl_b32 s45, s40, 6"); a("v_add_u32 v3, s45, v2")
    a("v_lshrrev_b32 v4, 2, v3")
    a("v_lshlrev_b32 v5, 2, v4"); a(f"v_add_u32 v5, {MS_S}, v5")
    a("v_mul_u32_u24 v4, 192, v4"); a("v_and_b32 v3, 3, v3"); a("v_lshl_add_u32 v4, v3, 4, v4"); a(f"v_add_u32 v4, {SL1}, v4")
    a("s_waitcnt vmcnt(0) lgkmcnt(0)")
    a.bar()
    for j in range(3): a(f"ds_read_b32 v{6+2*j}, v5 offset:{512*j}")
    a("s_waitcnt lgkmcnt(0)")
    for m in range(3):
        for j in range(3):
            r = R + (j*3+m)*4
            for d in range(4):
                a(f"v_lshlrev_b32 v{12+2*d}, 16, v{r+d}"); a(f"v_and_b32 v{13+2*d}, 0xffff0000, v{r+d}")
            for d in range(4): a(f"v_pk_mul_f32 {v(12+2*d,2)}, {v(12+2*d,2)}, {v(6+2*j,2)} op_sel_hi:[1,0]")
            for d in range(4): a(f"v_cvt_pk_bf16_f32 v{r+d}, v{12+2*d}, v{13+2*d}")
            a(f"ds_write_b128 v4, {v(r,4)} offset:{j*24576+m*64}")
    A0 = 56; XO = 60; B2A = 61
    a("v_lshrrev_b32 v3, 4, v2"); a("v_bfe_u32 v5, v2, 2, 2"); a("v_lshl_add_u32 v5, v3, 3, v5")
    a("v_mul_u32_u24 v5, 192, v5"); a("v_and_b32 v6, 3, v2"); a("v_lshl_add_u32 v5, v6, 4, v5")
    a("v_and_b32 v6, 1, v3"); a("v_lshl_add_u32 v5, v6, 3, v5")
    a("s_waitcnt lgkmcnt(0)")
    a(f"v_add_u32 v{A0}, {SL1}, v5"); a(f"v_xor_b32 v{A0+1}, 8, v{A0}")
    a(f"v_add_u32 v{A0+2}, {6*6144}, v{A0}"); a(f"v_add_u32 v{A0+3}, {6*6144}, v{A0+1}")
    a("v_and_b32 v6, 15, v2"); a(f"v_mul_u32_u24 v{XO}, 192, v6"); a(f"v_lshl_add_u32 v{XO}, v3, 4, v{XO}")
    a(f"v_lshlrev_b32 v{B2A}, 5, v3"); a(f"v_add_u32 v{B2A}, {MS_B2}, v{B2A}")
    a.bar()

    AC2 = 0
    XR2 = 16
    AB2 = [24, 28, 32, 36]
    BB2 = [40, 44, 48]
    ST2 = " sc1" if opt.get("osc1", 1) else ""
    def a_read(n, P):
        ks, u = divmod(n, 2); b = AB2[n % 4]
        ar = A0 + u + (2 if ks >= 6 else 0); ko = (ks % 6) * 6144
        a(f"ds_read_b64_tr_b16 {v(b,2)}, {v(ar)} offset:{ko+P*64}")
        a(f"ds_read_b64_tr_b16 {v(b+2,2)}, {v(ar)} offset:{ko+768+P*64}")
    def rnd(units, offs, ldsB=False):
        nu = len(units)
        for P in range(3):
            a.c(f"round {units} P={P}")
            for i in range(nu):
                a(f"buffer_load_dwordx4 {v(XR2+4*i,4)}, {v(XO)}, {s(SX,4)}, s{offs[i]} offen offset:{192+P*64}")
            for i in range(nu):
                for u in range(2): a(f"ds_read_b128 {v(AC2+8*i+4*u,4)}, {v(B2A)} offset:{P*128+u*16}")
            def b_read(ks):
                b = BB2[ks % 3]
                a(f"ds_read_b64_tr_b16 {v(b,2)}, {v(HO0)} offset:{ks*2048}")
                a(f"ds_read_b64_tr_b16 {v(b+2,2)}, {v(HO1)} offset:{ks*2048}")
            if ldsB: b_read(0); b_read(1)
            for n in range(3): a_read(n, P)
            for n in range(24):
                ks, u = divmod(n, 2)
                after = 0
                pend = [k for k in range(n+1, min(n+3, 24))]
                after = 2 * len(pend)
                if ldsB:
                    for st_ in range(max(n-2, 0), n):
                        if st_ % 2 == 0 and st_//2 + 2 <= 11: after += 2
                a(f"s_waitcnt lgkmcnt({after})")
                for i in range(nu):
                    bsrc = BB2[ks % 3] if ldsB else units[i] + 4*ks
                    ac = AC2 + 8*i + 4*u
                    a(f"v_mfma_f32_16x16x32_bf16 {v(ac,4)}, {v(AB2[n%4],4)}, {v(bsrc,4)}, {v(ac,4)}")
                if ldsB and u == 0 and ks + 2 <= 11: b_read(ks + 2)
                if n + 3 < 24: a_read(n + 3, P)
            a("s_waitcnt vmcnt(0)")
            a("s_nop 7")
            for i in range(nu):
                for d in range(4):
                    xr = XR2 + 4*i + d; ac = AC2 + 8*i + 2*d
                    a(f"v_lshlrev_b32 v52, 16, v{xr}"); a(f"v_and_b32 v53, 0xffff0000, v{xr}")
                    a(f"v_add_f32 v{ac}, v{ac}, v52"); a(f"v_add_f32 v{ac+1}, v{ac+1}, v53")
                    a(f"v_cvt_pk_bf16_f32 v{xr}, v{ac}, v{ac+1}")
                a(f"buffer_store_dwordx4 {v(XR2+4*i,4)}, {v(XO)}, {s(SO,4)}, s{offs[i]} offen offset:{P*64}{ST2}")
            a("s_nop 1")
    a("s_cmp_lt_u32 s40, 4"); a("s_cbranch_scc1 L_RB")
    rnd([None], [82], ldsB=True)
    a.lab("L_RB")
    rnd([U[2], U[3]], [62, 63])
    rnd([U[0], U[1]], [60, 61])
    a.lab("L_END")
    a("s_endpgm")

    hdr = f"""; Fused dwconv3x3 + LN + MLP(GELU, GRN) block; persistent, one workgroup per CU. Generated by gen/gen.py.
; @launch grid=(256,1,1) block=(512,1,1) lds={LDS_BYTES}
.amdgcn_target "amdgcn-amd-amdhsa--gfx950"
.text
.globl {NAME}_kernel
.p2align 8
.type {NAME}_kernel,@function
{NAME}_kernel:
"""
    ftr = f""".section .rodata,"a"
.p2align 6
.amdhsa_kernel {NAME}_kernel
  .amdhsa_next_free_vgpr 256
  .amdhsa_next_free_sgpr 96
  .amdhsa_accum_offset 256
  .amdhsa_group_segment_fixed_size 0
  .amdhsa_kernarg_size 72
  .amdhsa_user_sgpr_count 2
  .amdhsa_user_sgpr_kernarg_segment_ptr 1
  .amdhsa_system_sgpr_workgroup_id_x 1
.end_amdhsa_kernel
"""
    return hdr + a.text() + ftr

def wave_sum(a, regs, tmps):
    a("s_nop 1")
    for sh in (1, 2, 4, 8):
        for r in regs: a(f"v_add_f32_dpp v{r}, v{r}, v{r} row_ror:{sh} row_mask:0xf bank_mask:0xf")
        if len(regs) < 3: a("s_nop 1")
    for ins in ("v_permlane16_swap_b32", "v_permlane32_swap_b32"):
        for r, t in zip(regs, tmps): a(f"v_mov_b32 v{t}, v{r}")
        a("s_nop 1")
        for r, t in zip(regs, tmps): a(f"{ins} v{r}, v{t}")
        a("s_nop 1")
        for r, t in zip(regs, tmps): a(f"v_add_f32 v{r}, v{r}, v{t}")

if __name__ == "__main__":
    opt = {}
    out = f"cdna_kernels/{NAME}.s"
    for arg in sys.argv[1:]:
        k, _, val = arg.partition("=")
        if k == "out": out = val
        else: opt[k] = int(val)
    open(out, "w").write(gen(opt))
    print("wrote", out)
```
